```python
import torch

def _softmax(x, axis=-1):
    return torch.softmax(x, dim=axis)

def _gelu(x):
    return torch.nn.functional.gelu(x, approximate='tanh')

def _silu(x):
    return torch.nn.functional.silu(x)

def _sigmoid(x):
    return torch.sigmoid(x)

def _layernorm(x, axis=-1, eps=1e-05):
    m = x.mean(dim=axis, keepdim=True)
    v = x.var(dim=axis, keepdim=True, unbiased=False)
    return (x - m) / torch.sqrt(v + eps)

def _scatter_add(tgt, idx, src, axis=0):
    return tgt.clone().index_add_(axis, idx, src)

def _segment_sum(src, seg, n):
    out = torch.zeros((n,) + src.shape[1:], dtype=src.dtype)
    return out.index_add_(0, seg, src)

def _pad(x, pw):
    flat = tuple((v for pair in reversed(pw) for v in pair))
    return torch.nn.functional.pad(x, flat)
kernel_name = 'standalone__kv_cache_quant_pre_rope_vs_post_rope__prompt'

def setup_inputs():

    _w = lambda a: (lambda t: t.to(torch.bfloat16) if t.is_floating_point() else t)(torch.as_tensor(a))
    B, Sq, Skv = (1, 2048, 2048)
    H, Dh0 = (4, 128)
    G = 64 if 64 > 0 else Dh0
    G = max(2, G // 2 * 2)
    Dh = max(G, Dh0 // G * G)
    Skv = max(Skv, Sq)
    ng = Dh // G
    bits = 8 if 8 > 1 else 4
    bits = max(2, min(8, bits))
    qmax = (1 << bits) - 1
    half = Dh // 2
    inv = 1.0 / 10000.0 ** (torch.arange(half) / max(1, half))
    ang_k = torch.arange(Skv)[:, None] * inv[None, :]
    ang_q = torch.arange(Skv - Sq, Skv)[:, None] * inv[None, :]
    kc = torch.cat([torch.cos(ang_k), torch.cos(ang_k)], dim=-1)
    ks = torch.cat([torch.sin(ang_k), torch.sin(ang_k)], dim=-1)
    qc = torch.cat([torch.cos(ang_q), torch.cos(ang_q)], dim=-1)
    qs = torch.cat([torch.sin(ang_q), torch.sin(ang_q)], dim=-1)
    qk_i = torch.randint(0, qmax + 1, (B, H, Skv, Dh)).to(torch.int32)
    qv_i = torch.randint(0, qmax + 1, (B, H, Skv, Dh)).to(torch.int32)
    ksc = torch.abs((lambda *s: torch.randn(*s, dtype=torch.bfloat16) * 0.05)(B, H, Skv, ng)) * 0.1 + 0.01
    kzp = torch.full((B, H, Skv, ng), qmax / 2.0)
    vsc = torch.abs((lambda *s: torch.randn(*s, dtype=torch.bfloat16) * 0.05)(B, H, Skv, ng)) * 0.1 + 0.01
    vzp = torch.full((B, H, Skv, ng), qmax / 2.0)
    return {'q': _w((lambda *s: torch.randn(*s, dtype=torch.bfloat16) * 0.8)(B, H, Sq, Dh) * 0.5), 'qk': _w(qk_i), 'k_scales': _w(ksc), 'k_zeros': _w(kzp), 'qv': _w(qv_i), 'v_scales': _w(vsc), 'v_zeros': _w(vzp), 'q_cos': _w(qc), 'q_sin': _w(qs), 'k_cos': _w(kc), 'k_sin': _w(ks)}

def reference(q, qk, k_scales, k_zeros, qv, v_scales, v_zeros, q_cos, q_sin, k_cos, k_sin):
    B, H, Sq, Dh = q.shape
    ng = k_scales.shape[-1]
    G = Dh // ng
    half = Dh // 2
    ks = (lambda x, n, axis: torch.repeat_interleave(x, n, dim=axis))(k_scales, G, axis=-1)
    kz = (lambda x, n, axis: torch.repeat_interleave(x, n, dim=axis))(k_zeros, G, axis=-1)
    k = ((lambda x, dt: x.to(dt))(qk, q.dtype) - kz) * ks
    vs = (lambda x, n, axis: torch.repeat_interleave(x, n, dim=axis))(v_scales, G, axis=-1)
    vz = (lambda x, n, axis: torch.repeat_interleave(x, n, dim=axis))(v_zeros, G, axis=-1)
    v = ((lambda x, dt: x.to(dt))(qv, q.dtype) - vz) * vs
    k1 = k[..., :half].clone()
    k2 = k[..., half:].clone()
    krh = torch.concatenate([-k2, k1], axis=-1)
    kr = k * k_cos[None, None, :, :] + krh * k_sin[None, None, :, :]
    q1 = q[..., :half].clone()
    q2 = q[..., half:].clone()
    qrh = torch.concatenate([-q2, q1], axis=-1)
    qr = q * q_cos[None, None, :, :] + qrh * q_sin[None, None, :, :]
    logits = torch.einsum('bhqd,bhkd->bhqk', qr, kr) * float(Dh) ** (-0.5)
    attn = _softmax(logits, axis=-1)
    out = torch.einsum('bhqk,bhkd->bhqd', attn, v)
    return out
```

```python
import sys
src=open(sys.argv[1]).read()
kind=sys.argv[3]; arg=int(sys.argv[4],0); mult=int(sys.argv[5])
lines=src.split("\n")
li=[i for i,l in enumerate(lines) if l.startswith("; @launch")]
out=lines[:li[0]]+["; @launch kernel=probe_kernel grid=(256,1,1) block=(64,1,1) lds=0"]+lines[li[0]:]
t="\n".join(out)
body=""
if kind=="ws":
    body=f'''s_load_dwordx2 s[4:5], s[0:1], 104
v_lshlrev_b32 v1, 4, v0
s_lshl_b32 s6, s2, 13
v_add_u32 v1, s6, v1
v_add_u32 v2, 4096, v1
s_waitcnt lgkmcnt(0)
s_add_u32 s4, s4, {arg}
s_addc_u32 s5, s5, 0
s_memrealtime s[16:17]
''' + "".join(f"global_load_dwordx4 v[{4+4*i}:{7+4*i}], v{1+i//4}, s[4:5] offset:{(i%4)*1024}\n" for i in range(8)) + '''s_waitcnt vmcnt(0)
s_memrealtime s[18:19]
'''
elif kind=="in":
    body=f'''s_load_dwordx2 s[4:5], s[0:1], {arg}
v_lshlrev_b32 v1, 4, v0
s_lshl_b32 s6, s2, 13
v_add_u32 v1, s6, v1
v_add_u32 v2, 4096, v1
s_waitcnt lgkmcnt(0)
s_memrealtime s[16:17]
''' + "".join(f"global_load_dwordx4 v[{4+4*i}:{7+4*i}], v{1+i//4}, s[4:5] offset:{(i%4)*1024}\n" for i in range(8)) + '''s_waitcnt vmcnt(0)
s_memrealtime s[18:19]
'''
elif kind in ("tlb", "tlbst"):
    op = "global_load_dwordx4 v[4:7], v1, s[4:5]" if kind == "tlb" else "global_store_dwordx4 v1, v[4:7], s[4:5] sc1"
    body=f"""s_load_dwordx2 s[4:5], s[0:1], 104
v_lshlrev_b32 v1, 4, v0
s_lshl_b32 s6, s2, 10
v_add_u32 v1, s6, v1
s_waitcnt lgkmcnt(0)
s_add_u32 s4, s4, 0x1000000
s_addc_u32 s5, s5, 0
global_load_dwordx4 v[4:7], v1, s[4:5]
s_waitcnt vmcnt(0)
s_add_u32 s4, s4, {arg}
s_addc_u32 s5, s5, 0
s_memrealtime s[16:17]
{op}
s_waitcnt vmcnt(0)
s_memrealtime s[18:19]
"""
elif kind=="code":
    body="s_memrealtime s[16:17]\n.rept 4096\nv_fma_f32 v4, v5, v6, v7\n.endr\ns_memrealtime s[18:19]\n"
t+=f'''
.text
.globl probe_kernel
.p2align 8
.type probe_kernel,@function
probe_kernel:
s_cmp_ge_u32 s2, 256
s_cbranch_scc1 Lprobe_end
{body}s_waitcnt lgkmcnt(0)
s_sub_u32 s6, s18, s16
s_mul_i32 s6, s6, {mult}
s_min_u32 s6, s6, 20000
Lpspin:
s_memrealtime s[8:9]
s_waitcnt lgkmcnt(0)
s_sub_u32 s7, s8, s18
s_cmp_lt_u32 s7, s6
s_cbranch_scc1 Lpspin
Lprobe_end:
s_endpgm
.section .rodata,"a"
.p2align 6
.amdhsa_kernel probe_kernel
  .amdhsa_next_free_vgpr 40
  .amdhsa_next_free_sgpr 32
  .amdhsa_accum_offset 40
  .amdhsa_group_segment_fixed_size 0
  .amdhsa_kernarg_size 112
  .amdhsa_user_sgpr_count 2
  .amdhsa_user_sgpr_kernarg_segment_ptr 1
  .amdhsa_system_sgpr_workgroup_id_x 1
.end_amdhsa_kernel
.text
'''
open(sys.argv[2],"w").write(t)
```

```python
import sys,re
src=open(sys.argv[1]).read(); mode=sys.argv[3]; K=int(sys.argv[4]); mult=int(sys.argv[5])
out=[]
for l in src.split("\n"):
    s=l.strip()
    if s==";STAMPINIT": out+=["s_memrealtime s[64:65]","s_mov_b32 s99, s2"]; continue
    m=re.match(r";C?STAMP (\d+)",s)
    if m:
        k=int(m.group(1))
        out.append(f"s_memrealtime s[{64+2*k}:{65+2*k}]")
        if k==4 and s[1]=="S":
            out+=["s_cmp_ge_u32 s99, 8","s_cbranch_scc1 Lnost","s_lshl_b32 s98, s99, 7","s_add_u32 s98, s98, 0x2000000","v_mov_b32 v230, s98","v_mov_b32 v231, s64",
                  "global_store_dword v230, v231, s[22:23] sc1","Lnost:"]
        continue
    if s.startswith(";DUMP"):
        out+=["v_and_b32 v1, 7, v0","v_lshlrev_b32 v1, 7, v1","v_add_u32 v1, 0x2000000, v1","global_load_dword v2, v1, s[22:23] sc1","s_waitcnt vmcnt(0) lgkmcnt(0)"]
        for j in range(8): out.append(f"v_readlane_b32 s{j}, v2, {j}")
        out+=["s_nop 4","s_mov_b32 s8, s0","s_mov_b32 s9, s0"]
        for j in range(1,8): out+=[f"s_max_u32 s8, s8, s{j}",f"s_min_u32 s9, s9, s{j}"]
        if mode=="skew": out+=["s_sub_u32 s98, s8, s9"]
        elif mode=="late": out+=[f"s_sub_u32 s98, s{64+2*K}, s8","s_max_i32 s98, s98, 0"]
        elif mode=="first": out+=[f"s_sub_u32 s98, s{64+2*K}, s9"]
        elif mode=="idx": out+=[f"s_sub_u32 s98, s{K}, s9"]
        out+=["s_memrealtime s[96:97]","s_waitcnt lgkmcnt(0)",f"s_mul_i32 s98, s98, {mult}","s_min_u32 s98, s98, 20000",
              "Lsp:","s_memrealtime s[100:101]","s_waitcnt lgkmcnt(0)","s_sub_u32 s99, s100, s96","s_cmp_lt_u32 s99, s98","s_cbranch_scc1 Lsp"]
        continue
    l=re.sub(r"\.amdhsa_next_free_sgpr \d+",".amdhsa_next_free_sgpr 102",l)
    out.append(l)
open(sys.argv[2],"w").write("\n".join(out))
```

```python
import sys
src=open(sys.argv[1]).read()
kind=sys.argv[3]; arg=int(sys.argv[4],0); mult=int(sys.argv[5])
lines=src.split("\n")
li=[i for i,l in enumerate(lines) if l.startswith("; @launch")]
out=lines[:li[0]]+["; @launch kernel=probe_kernel grid=(256,1,1) block=(64,1,1) lds=0"]+lines[li[0]:]
t="\n".join(out)
body=""
if kind=="ws":
    body=f'''s_load_dwordx2 s[4:5], s[0:1], 104
v_lshlrev_b32 v1, 4, v0
s_lshl_b32 s6, s2, 13
v_add_u32 v1, s6, v1
v_add_u32 v2, 4096, v1
s_waitcnt lgkmcnt(0)
s_add_u32 s4, s4, {arg}
s_addc_u32 s5, s5, 0
s_memrealtime s[16:17]
''' + "".join(f"global_load_dwordx4 v[{4+4*i}:{7+4*i}], v{1+i//4}, s[4:5] offset:{(i%4)*1024}\n" for i in range(8)) + '''s_waitcnt vmcnt(0)
s_memrealtime s[18:19]
'''
elif kind=="in":
    body=f'''s_load_dwordx2 s[4:5], s[0:1], {arg}
v_lshlrev_b32 v1, 4, v0
s_lshl_b32 s6, s2, 13
v_add_u32 v1, s6, v1
v_add_u32 v2, 4096, v1
s_waitcnt lgkmcnt(0)
s_memrealtime s[16:17]
''' + "".join(f"global_load_dwordx4 v[{4+4*i}:{7+4*i}], v{1+i//4}, s[4:5] offset:{(i%4)*1024}\n" for i in range(8)) + '''s_waitcnt vmcnt(0)
s_memrealtime s[18:19]
'''
elif kind in ("tlb", "tlbst"):
    op = "global_load_dwordx4 v[4:7], v1, s[4:5]" if kind == "tlb" else "global_store_dwordx4 v1, v[4:7], s[4:5] sc1"
    body=f"""s_load_dwordx2 s[4:5], s[0:1], 104
v_lshlrev_b32 v1, 4, v0
s_lshl_b32 s6, s2, 10
v_add_u32 v1, s6, v1
s_waitcnt lgkmcnt(0)
s_add_u32 s4, s4, 0x1000000
s_addc_u32 s5, s5, 0
global_load_dwordx4 v[4:7], v1, s[4:5]
s_waitcnt vmcnt(0)
s_add_u32 s4, s4, {arg}
s_addc_u32 s5, s5, 0
s_memrealtime s[16:17]
{op}
s_waitcnt vmcnt(0)
s_memrealtime s[18:19]
"""
elif kind in ("stb", "ldb", "rwb"):
    st="".join(f"global_store_dwordx4 v{1+i//4}, v[20:23], s[4:5] offset:{(i%4)*1024} sc1\n" for i in range(arg))
    ld="".join(f"global_load_dwordx4 v[20:23], v{1+i//4}, s[4:5] offset:{(i%4)*1024} sc1\n" for i in range(arg))
    body=f"""s_load_dwordx2 s[4:5], s[0:1], 104
v_lshlrev_b32 v1, 4, v0
s_mul_i32 s6, s2, {arg*1024}
v_mov_b32 v9, 0
v_add_u32 v1, s6, v1
v_add_u32 v2, 4096, v1
v_add_u32 v3, 8192, v1
v_add_u32 v4, 12288, v1
s_waitcnt lgkmcnt(0)
s_add_u32 s4, s4, 0x1000000
s_addc_u32 s5, s5, 0
global_load_dword v10, v9, s[4:5] offset:-128
s_waitcnt vmcnt(0)
""" + (st + "s_waitcnt vmcnt(0)\ns_sleep 40\n" if kind == "rwb" else "") + "s_memrealtime s[16:17]\n" + (st if kind == "stb" else ld) + "s_waitcnt vmcnt(0)\ns_memrealtime s[18:19]\n"
elif kind=="code":
    body="s_memrealtime s[16:17]\n.rept 4096\nv_fma_f32 v4, v5, v6, v7\n.endr\ns_memrealtime s[18:19]\n"
t+=f'''
.text
.globl probe_kernel
.p2align 8
.type probe_kernel,@function
probe_kernel:
s_cmp_ge_u32 s2, 256
s_cbranch_scc1 Lprobe_end
{body}s_waitcnt lgkmcnt(0)
s_sub_u32 s6, s18, s16
s_mul_i32 s6, s6, {mult}
s_min_u32 s6, s6, 20000
Lpspin:
s_memrealtime s[8:9]
s_waitcnt lgkmcnt(0)
s_sub_u32 s7, s8, s18
s_cmp_lt_u32 s7, s6
s_cbranch_scc1 Lpspin
Lprobe_end:
s_endpgm
.section .rodata,"a"
.p2align 6
.amdhsa_kernel probe_kernel
  .amdhsa_next_free_vgpr 40
  .amdhsa_next_free_sgpr 32
  .amdhsa_accum_offset 40
  .amdhsa_group_segment_fixed_size 0
  .amdhsa_kernarg_size 112
  .amdhsa_user_sgpr_count 2
  .amdhsa_user_sgpr_kernarg_segment_ptr 1
  .amdhsa_system_sgpr_workgroup_id_x 1
.end_amdhsa_kernel
.text
'''
open(sys.argv[2],"w").write(t)
```

```python
import sys,re
src=open(sys.argv[1]).read(); mode=sys.argv[3]; K=int(sys.argv[4]); mult=int(sys.argv[5])
out=[]
for l in src.split("\n"):
    s=l.strip()
    if s==";STAMPINIT": out+=["s_memrealtime s[64:65]","s_mov_b32 s99, s2"]; continue
    m=re.match(r";C?STAMP (\d+)",s)
    if m:
        k=int(m.group(1))
        if k==K and s[1]=="S": out.append(f"s_memrealtime s[{64+2*k}:{65+2*k}]")
        if k==7 and s[1]=="S":
            out+=["s_cmp_ge_u32 s99, 8","s_cbranch_scc1 Lnost","s_lshl_b32 s98, s99, 7","s_add_u32 s98, s98, 0x2000000","v_mov_b32 v240, s98","v_mov_b32 v241, s64",
                  "global_store_dword v240, v241, s[22:23] sc1","Lnost:"]
        continue
    if s.startswith(";DUMP"):
        out+=["v_and_b32 v1, 7, v0","v_lshlrev_b32 v1, 7, v1","v_add_u32 v1, 0x2000000, v1","global_load_dword v2, v1, s[22:23] sc1","s_waitcnt vmcnt(0) lgkmcnt(0)"]
        for j in range(8): out.append(f"v_readlane_b32 s{j}, v2, {j}")
        out+=["s_nop 4","s_mov_b32 s8, s0","s_mov_b32 s9, s0"]
        for j in range(1,8): out+=[f"s_max_u32 s8, s8, s{j}",f"s_min_u32 s9, s9, s{j}"]
        if mode=="skew": out+=["s_sub_u32 s98, s8, s9"]
        elif mode=="late": out+=[f"s_sub_u32 s98, s{64+2*K}, s8","s_max_i32 s98, s98, 0"]
        elif mode=="first": out+=[f"s_sub_u32 s98, s{64+2*K}, s9"]
        elif mode=="idx": out+=[f"s_sub_u32 s98, s{K}, s9"]
        out+=["s_memrealtime s[96:97]","s_waitcnt lgkmcnt(0)",f"s_mul_i32 s98, s98, {mult}","s_min_u32 s98, s98, 20000",
              "Lsp:","s_memrealtime s[100:101]","s_waitcnt lgkmcnt(0)","s_sub_u32 s99, s100, s96","s_cmp_lt_u32 s99, s98","s_cbranch_scc1 Lsp"]
        continue
    l=re.sub(r"\.amdhsa_next_free_sgpr \d+",".amdhsa_next_free_sgpr 102",l)
    out.append(l)
open(sys.argv[2],"w").write("\n".join(out))
```
